```python
import torch

def _softmax(x, axis=-1):
    return torch.softmax(x, dim=axis)
def _gelu(x):
    return torch.nn.functional.gelu(x, approximate="tanh")
def _silu(x):
    return torch.nn.functional.silu(x)
def _sigmoid(x):
    return torch.sigmoid(x)
def _layernorm(x, axis=-1, eps=1e-5):
    m = x.mean(dim=axis, keepdim=True)
    v = x.var(dim=axis, keepdim=True, unbiased=False)
    return (x - m) / torch.sqrt(v + eps)
def _scatter_add(tgt, idx, src, axis=0):
    return tgt.clone().index_add_(axis, idx, src)
def _segment_sum(src, seg, n):
    out = torch.zeros((n,) + src.shape[1:], dtype=src.dtype)
    return out.index_add_(0, seg, src)
def _pad(x, pw):
    flat = tuple(v for pair in reversed(pw) for v in pair)
    return torch.nn.functional.pad(x, flat)

kernel_name = 'standalone__deep_cross_wide_deep__recsys'

def setup_inputs():

    _w = (lambda a: (lambda t: t.to(torch.bfloat16) if t.is_floating_point() else t)(torch.as_tensor(a)))
    B, F, D = 1024, 100, 128
    V, Nd = min(1000, 100000), 13
    Din = F * D
    H = 4 * D
    return {
        "idx": _w((lambda lo, hi, *s: torch.randint(lo, hi, s))(0, V, B, F).to(torch.int64)),
        "table": _w((lambda *s: torch.randn(*s, dtype=torch.bfloat16) * 1.6)(V, D) * 0.05),
        "x_wide": _w((lambda *s: torch.randn(*s, dtype=torch.bfloat16) * 1.6)(B, Nd)),
        "w_wide": _w((lambda *s: torch.randn(*s, dtype=torch.bfloat16) * 1.6)(Nd) * 0.05),
        "b_wide": _w((lambda *s: torch.randn(*s, dtype=torch.bfloat16) * 1.6)(1) * 0.01),
        "W1": _w((lambda *s: torch.randn(*s, dtype=torch.bfloat16) * 1.6)(Din, H) * (2.0 / Din) ** 0.5),
        "b1": _w((lambda *s: torch.randn(*s, dtype=torch.bfloat16) * 1.6)(H) * 0.01),
        "W2": _w((lambda *s: torch.randn(*s, dtype=torch.bfloat16) * 1.6)(H) * (1.0 / H) ** 0.5),
        "b2": _w((lambda *s: torch.randn(*s, dtype=torch.bfloat16) * 1.6)(1) * 0.01),
    }

def reference(idx, table, x_wide, w_wide, b_wide, W1, b1, W2, b2):
    emb = table[idx]
    deep_in = emb.reshape(emb.shape[0], -1)
    h = deep_in @ W1 + b1
    h = h * (lambda x, dt: x.to(dt))(h > 0, h.dtype)
    deep_logit = h @ W2 + b2
    wide_logit = x_wide @ w_wide + b_wide
    return _sigmoid(wide_logit + deep_logit)
```

```python
import sys, argparse

HEADER = """; Kernarg layout for this problem (96 bytes, ptrs only, base s[0:1]):
"""

class Asm:
    def __init__(self):
        self.lines = []
    def __call__(self, s):
        self.lines.append("    " + s)
    def label(self, s):
        self.lines.append(s + ":")
    def raw(self, s):
        self.lines.append(s)
    def comment(self, s):
        self.lines.append("    ; " + s)
    def text(self):
        return "\n".join(self.lines) + "\n"

def vr(b, n=1):
    return f"v{b}" if n == 1 else f"v[{b}:{b+n-1}]"
def ar(b, n=1):
    return f"a{b}" if n == 1 else f"a[{b}:{b+n-1}]"
def sr(b, n=1):
    return f"s{b}" if n == 1 else f"s[{b}:{b+n-1}]"

K1 = "standalone__deep_cross_wide_deep__recsys_kernel"
K2 = "dcwd_reduce_kernel"

PITCH = 80
TBL_ROWS = 1008
ATAB = TBL_ROWS * PITCH
AT_STRIDE = 264
ATAB_END = ATAB + 128 * AT_STRIDE
LDS1 = 114688

def gen_k1(a, opt):
    stamps = opt.stamps
    a.raw(f".globl {K1}")
    a.raw(".p2align 8")
    a.raw(f".type {K1},@function")
    a.label(K1)
    S_IDX, S_TBL, S_W1, S_WS = 12, 16, 20, 24
    sMT, sNT, sQ, sW = 28, 29, 30, 31
    s80, sSELLO, sSELHI, sKS = 32, 33, 34, 35
    sCNT, sT0, sT1, sM0 = 36, 37, 38, 39
    sST = 40
    vLANE, vW, vAT, vH16 = 1, 2, 3, 4
    vADDR = 5
    vT = 9
    TR = 16
    vX = 26
    RAW = 32
    WR = 112
    ACC0 = 192
    EF = 96
    def acc(tau, p):
        if tau == 0:
            return vr(ACC0 + p * 16, 16)
        return ar(((tau - 1) * 2 + p) * 16, 16)

    a("s_cmp_ge_u32 s2, 256")
    a(f"s_cbranch_scc1 L_k1_end")
    a("s_load_dwordx4 s[4:7], s[0:1], 0")
    a("s_load_dwordx2 s[8:9], s[0:1], 40")
    a("s_load_dwordx2 s[10:11], s[0:1], 88")
    if stamps:
        a("s_load_dwordx2 s[44:45], s[0:1], 80")
        a(f"s_memrealtime s[{sST}:{sST+1}]")
    a(f"s_and_b32 s{sNT}, s2, 7")
    a(f"s_lshr_b32 s{sT0}, s2, 3")
    a(f"s_and_b32 s{sQ}, s{sT0}, 3")
    a(f"s_lshr_b32 s{sMT}, s{sT0}, 2")
    a(f"v_and_b32 v{vLANE}, 63, v0")
    a(f"v_lshrrev_b32 v{vT}, 6, v0")
    a(f"s_mov_b32 s{s80}, {PITCH}")
    a(f"v_readfirstlane_b32 s{sW}, v{vT}")
    a(f"s_mov_b32 s{sSELLO}, 0x05040100")
    a(f"s_mov_b32 s{sSELHI}, 0x07060302")
    a(f"s_mov_b32 s{sKS}, 16384")
    a(f"s_and_b32 s{sT0}, s{sW}, 1")
    a(f"s_lshl_b32 s{sT0}, s{sT0}, 4")
    a(f"s_lshl_b32 s{sT1}, s{sMT}, 7")
    a(f"s_add_u32 s{sT0}, s{sT0}, s{sT1}")
    a(f"v_lshrrev_b32 v{vT}, 2, v{vLANE}")
    a(f"v_add_u32 v{vT+1}, s{sT0}, v{vT}")
    a(f"s_movk_i32 s{sT1}, 400")
    a(f"v_mul_lo_u32 v{vT+1}, v{vT+1}, s{sT1}")
    a(f"v_and_b32 v{vT+2}, 3, v{vLANE}")
    a(f"s_lshr_b32 s{sT0}, s{sW}, 1")
    a(f"s_lshl_b32 s{sT0}, s{sT0}, 6")
    a(f"v_lshl_add_u32 v{vT+1}, v{vT+2}, 4, v{vT+1}")
    a(f"v_add_u32 v{vX}, s{sT0}, v{vT+1}")
    a(f"v_add_u32 v{vX+1}, 12800, v{vX}")
    a(f"v_add_u32 v{vX+2}, 25600, v{vX}")
    a(f"v_add_u32 v{vX+3}, 38400, v{vX}")
    a(f"s_lshr_b32 s{sT0}, s{sW}, 1")
    a(f"s_mul_i32 s{sT0}, s{sT0}, {16*AT_STRIDE}")
    a(f"s_and_b32 s{sT1}, s{sW}, 1")
    a(f"s_lshl_b32 s{sT1}, s{sT1}, 7")
    a(f"s_add_u32 s{sT0}, s{sT0}, s{sT1}")
    a(f"s_add_u32 s{sT0}, s{sT0}, {ATAB}")
    a(f"v_mul_u32_u24 v{vX+4}, {4*AT_STRIDE}, v{vT+2}")
    a(f"v_lshl_add_u32 v{vX+4}, v{vT}, 3, v{vX+4}")
    a(f"v_add_u32 v{vX+4}, s{sT0}, v{vX+4}")
    a(f"v_mul_u32_u24 v{vT}, 205, v{vLANE}")
    a(f"v_lshrrev_b32 v{vT}, 10, v{vT}")
    a(f"v_mul_u32_u24 v{vT+1}, 5, v{vT}")
    a(f"v_sub_u32 v{vT+1}, v{vLANE}, v{vT+1}")
    a(f"v_lshlrev_b32 v{vT}, 8, v{vT}")
    a(f"v_lshl_add_u32 v{vT}, v{vT+1}, 4, v{vT}")
    a(f"s_mul_i32 s{sT0}, s{sW}, 3072")
    a(f"s_lshl_b32 s{sT1}, s{sQ}, 6")
    a(f"s_add_u32 s{sT0}, s{sT0}, s{sT1}")
    a(f"v_add_u32 v{vX+5}, s{sT0}, v{vT}")
    a(f"s_mul_i32 s{sM0}, s{sW}, 960")
    a(f"v_lshrrev_b32 v{vT}, 4, v{vLANE}")
    a(f"v_lshlrev_b32 v{vT}, 12, v{vT}")
    a(f"v_and_b32 v{vT+1}, 15, v{vLANE}")
    a(f"v_lshl_add_u32 v{vT}, v{vT+1}, 3, v{vT}")
    a(f"s_lshl_b32 s{sT0}, s{sW}, 17")
    a(f"s_lshl_b32 s{sT1}, s{sQ}, 15")
    a(f"s_add_u32 s{sT0}, s{sT0}, s{sT1}")
    a(f"s_lshl_b32 s{sT1}, s{sNT}, 7")
    a(f"s_add_u32 s{sT0}, s{sT0}, s{sT1}")
    a(f"v_add_u32 v{vW}, s{sT0}, v{vT}")
    a(f"v_lshrrev_b32 v{vT}, 5, v{vLANE}")
    a(f"v_lshlrev_b32 v{vH16}, 4, v{vT}")
    a(f"v_lshlrev_b32 v{vT}, 20, v{vT}")
    a(f"v_and_b32 v{vT+1}, 31, v{vLANE}")
    a(f"v_lshl_add_u32 v{vT}, v{vT+1}, 10, v{vT}")
    a(f"s_lshl_b32 s{sT0}, s{sW}, 21")
    a(f"s_lshl_b32 s{sT1}, s{sMT}, 17")
    a(f"s_add_u32 s{sT0}, s{sT0}, s{sT1}")
    a(f"s_lshl_b32 s{sT1}, s{sQ}, 15")
    a(f"s_add_u32 s{sT0}, s{sT0}, s{sT1}")
    a(f"s_lshl_b32 s{sT1}, s{sNT}, 7")
    a(f"s_add_u32 s{sT0}, s{sT0}, s{sT1}")
    a(f"v_add_u32 v{vT+2}, s{sT0}, v{vT}")
    a(f"v_add_u32 v{vT+3}, 0x800000, v{vT+2}")
    a(f"s_mul_i32 s{sT0}, s{sW}, {AT_STRIDE}")
    a(f"s_add_u32 s{sT0}, s{sT0}, {ATAB}")
    a(f"v_lshlrev_b32 v{vT+1}, 3, v{vT+1}")
    a(f"v_add_u32 v{vAT}, s{sT0}, v{vT+1}")
    a("s_waitcnt lgkmcnt(0)")
    for (srd, ptr, nbytes) in ((S_IDX, 4, 409600), (S_TBL, 6, 256000), (S_W1, 8, 13107200), (S_WS, 10, 8 << 20)):
        a(f"s_mov_b32 s{srd}, s{ptr}")
        a(f"s_and_b32 s{srd+1}, s{ptr+1}, 0xffff")
        a(f"s_mov_b32 s{srd+2}, {nbytes}")
        a(f"s_mov_b32 s{srd+3}, 0x20000")
    IDX = WR
    for u in range(4):
        for t in range(4):
            a(f"buffer_load_dwordx4 {vr(IDX + (u*4+t)*4, 4)}, v{vX+t}, s[{S_IDX}:{S_IDX+3}], 0 offen offset:{u*128}")
    a("s_mov_b32 exec_hi, 0x0fffffff")
    for u in range(21):
        a(f"s_add_u32 m0, s{sM0}, {u*3840}")
        if u > 0:
            a(f"v_add_u32 v{vX+5}, 12288, v{vX+5}")
        else:
            a("s_nop 0")
        a(f"buffer_load_dwordx4 v{vX+5}, s[{S_TBL}:{S_TBL+3}], 0 offen lds")
    a("s_mov_b64 exec, -1")
    npf = 0
    if opt.pf:
        a(f"buffer_load_dword v{vT+5}, v{vT+2}, s[{S_W1}:{S_W1+3}], 0 offen")
        a(f"buffer_load_dword v{vT+6}, v{vT+3}, s[{S_W1}:{S_W1+3}], 0 offen")
        npf = 2
    def bloads(slot):
        out = []
        for ks in range(2):
            for j in range(4):
                so = "0" if ks == 0 else f"s{sKS}"
                out.append(f"buffer_load_dwordx2 {vr(RAW + slot*16 + (ks*4+j)*2, 2)}, v{vW}, s[{S_W1}:{S_W1+3}], {so} offen offset:{j*1024}")
        return out
    for slot in range(3):
        for x in bloads(slot):
            a(x)
        a(f"v_add_u32 v{vW}, 0x80000, v{vW}")
    for i in range(32):
        a(f"v_mov_b32 v{ACC0+i}, 0")
    for i in range(96):
        a(f"v_accvgpr_write_b32 a{i}, 0")
    a(f"s_waitcnt vmcnt({21+npf+24})")
    for u in range(4):
        for i in range(4):
            I = lambda t: IDX + (u*4 + (t & 3))*4 + i
            d = 10 + (i & 1) * 2
            a(f"v_lshl_or_b32 v{d}, v{I(i+1)}, 16, v{I(i)}")
            a(f"v_lshl_or_b32 v{d+1}, v{I(i+3)}, 16, v{I(i+2)}")
            a(f"ds_write_b64 v{vX+4}, {vr(d,2)} offset:{u*32*AT_STRIDE + i*AT_STRIDE}")
    for slot in range(3, 5):
        for x in bloads(slot):
            a(x)
        a(f"v_add_u32 v{vW}, 0x80000, v{vW}")
    a(f"s_waitcnt vmcnt({npf+40}) lgkmcnt(0)")
    a("s_barrier")
    if stamps:
        a(f"s_memrealtime s[{sST+2}:{sST+3}]")
    a(f"ds_read_b64 {vr(TR,2)}, v{vAT}")
    a(f"ds_read_b64 {vr(TR+2,2)}, v{vAT} offset:{4*AT_STRIDE}")
    def perms(slot):
        out = []
        for ks in range(2):
            R = lambda j, d: RAW + slot*16 + (ks*4+j)*2 + d
            Wb = WR + slot*16 + ks*8
            ps = []
            for q in range(4):
                for ip in range(2):
                    dst = Wb + (q >> 1)*4 + (q & 1)*2 + ip
                    sel = sSELLO if (q & 1) == 0 else sSELHI
                    ps.append(f"v_perm_b32 v{dst}, v{R(2*ip+1, q>>1)}, v{R(2*ip, q>>1)}, s{sel}")
            sw = []
            for half in range(2):
                for ip in range(2):
                    sw.append(f"v_permlane16_swap_b32 v{Wb+half*4+ip}, v{Wb+half*4+2+ip}")
            out += ps + sw
        return out
    def mads(slot):
        out = []
        for tau in range(4):
            src = TR + slot*2 + (tau >> 1)
            osel = " op_sel:[1,0,0,0]" if tau & 1 else ""
            out.append(f"v_mad_u32_u16 v{vADDR+tau}, v{src}, s{s80}, v{vH16}{osel}")
        return out
    def eread(k):
        ks, tau = k >> 2, k & 3
        off = f" offset:{ks*32}" if ks else ""
        return f"ds_read_b128 {ar(EF + k*4, 4)}, v{vADDR+tau}{off}"
    a(f"s_waitcnt vmcnt(32)")
    pl = perms(0)
    for x in pl:
        a(x)
    a("s_waitcnt lgkmcnt(1)")
    for x in mads(0):
        a(x)
    for k in range(8):
        a(eread(k))
    a(f"s_mov_b32 s{sCNT}, 5")
    a(".p2align 6") if opt.align else None
    a.label("L_k1_loop")
    for u in range(5):
        s_cur, s_nxt, s_n2 = u, (u+1) % 5, (u+2) % 5
        fill = [[] for _ in range(16)]
        pre = [[] for _ in range(16)]
        pre[0].append("s_waitcnt vmcnt(24) lgkmcnt(6)")
        md = mads(s_nxt)
        pre[0] += []
        fill[0].append(md[0])
        fill[0].append(f"ds_read_b64 {vr(TR+s_n2*2,2)}, v{vAT} offset:{(u+2)*4*AT_STRIDE}")
        fill[0].append(md[1])
        fill[1].append(eread(0))
        fill[1].append(md[2])
        fill[2].append(md[3])
        for k in range(1, 8):
            fill[2*k+1].append(eread(k))
        for k in (2, 4, 6):
            pre[2*k].append("s_waitcnt lgkmcnt(7)")
        bl = bloads(s_cur)
        pm = perms(s_nxt)
        for n, x in enumerate(bl):
            fill[2+n].append(x)
        fill[10].append(f"v_add_u32 v{vW}, 0x80000, v{vW}")
        sched = [2,2,3,3,4,4,5,5, 7,7,8,8,  9,9,10,10,11,11,12,12, 14,14,15,15]
        for x, m in zip(pm, sched):
            fill[m].append(x)
        if u == 4:
            fill[12].append(f"v_add_u32 v{vAT}, {5*4*AT_STRIDE}, v{vAT}")
            fill[13].append(f"s_sub_u32 s{sCNT}, s{sCNT}, 1")
            fill[15].append(f"s_cmp_lg_u32 s{sCNT}, 0")
        for m in range(16):
            ks, tau, p = m >> 3, (m >> 1) & 3, m & 1
            for x in pre[m]:
                a(x)
            a(f"v_mfma_f32_32x32x16_bf16 {acc(tau,p)}, {vr(WR + s_cur*16 + ks*8 + p*4, 4)}, {ar(EF + (ks*4+tau)*4, 4)}, {acc(tau,p)}")
            for x in fill[m]:
                a(x)
    a("s_cbranch_scc1 L_k1_loop")
    if stamps:
        a(f"s_memrealtime s[{sST+4}:{sST+5}]")
    a("s_waitcnt vmcnt(0) lgkmcnt(0)")
    a("s_barrier")
    for tau in range(1, 4):
        a(f"s_add_u32 s{sT0}, s{sW}, {tau}")
        a(f"s_and_b32 s{sT0}, s{sT0}, 3")
        a(f"s_mul_i32 s{sT0}, s{sT0}, 24576")
        a(f"s_add_u32 s{sT0}, s{sT0}, {(tau-1)*8192}")
        a(f"v_lshlrev_b32 v{vT}, 4, v{vLANE}")
        a(f"v_add_u32 v{vT+tau}, s{sT0}, v{vT}")
    for tau in range(1, 4):
        for blk in range(8):
            a(f"ds_write_b128 v{vT+tau}, {ar((tau-1)*32 + blk*4, 4)} offset:{blk*1024}")
    a(f"s_mul_i32 s{sT0}, s{sW}, 24576")
    a(f"v_add_u32 v{vT}, s{sT0}, v{vT}")
    a(f"v_and_b32 v{vX}, 31, v{vLANE}")
    a(f"v_lshrrev_b32 v{vX+1}, 2, v{vX}")
    a(f"v_lshlrev_b32 v{vX+1}, 7, v{vX+1}")
    a(f"v_and_b32 v{vX}, 3, v{vLANE}")
    a(f"v_lshl_add_u32 v{vX+1}, v{vX}, 4, v{vX+1}")
    a(f"v_lshl_add_u32 v{vX+1}, v{vH16}, 2, v{vX+1}")
    a(f"s_lshl_b32 s{sT0}, s{sMT}, 2")
    a(f"s_add_u32 s{sT0}, s{sT0}, s{sW}")
    a(f"s_lshl_b32 s{sT0}, s{sT0}, 3")
    a(f"s_add_u32 s{sT0}, s{sT0}, s{sNT}")
    a(f"s_lshl_b32 s{sT0}, s{sT0}, 13")
    a(f"s_lshl_b32 s{sT1}, s{sQ}, 21")
    a(f"s_add_u32 s{sT0}, s{sT0}, s{sT1}")
    a(f"v_add_u32 v{vX+1}, s{sT0}, v{vX+1}")
    a(f"v_add_u32 v{vX+2}, 4096, v{vX+1}")
    a("s_waitcnt lgkmcnt(0)")
    a("s_barrier")
    for sg in range(3):
        for blk in range(8):
            a(f"ds_read_b128 {vr(RAW + (sg*8+blk)*4, 4)}, v{vT} offset:{sg*8192 + blk*1024}")
    st_flags = " sc1" if opt.sc1 else (" nt" if opt.nt else "")
    for blk in range(8):
        a(f"s_waitcnt lgkmcnt({7-blk})")
        for r in range(0, 4, 2):
            d = ACC0 + blk*4 + r
            for sg in range(3):
                a(f"v_pk_add_f32 {vr(d,2)}, {vr(d,2)}, {vr(RAW + (sg*8+blk)*4 + r, 2)}")
        va = vX+1 if blk < 4 else vX+2
        a(f"buffer_store_dwordx4 {vr(ACC0+blk*4,4)}, v{va}, s[{S_WS}:{S_WS+3}], 0 offen offset:{(blk&3)*1024}{st_flags}")
    if stamps:
        a("s_waitcnt vmcnt(0)")
        a(f"s_memrealtime s[{sST+6}:{sST+7}]")
        a("s_waitcnt lgkmcnt(0)")
        a(f"s_lshl_b32 s{sT0}, s2, 2")
        a(f"s_add_u32 s{sT0}, s{sT0}, s{sW}")
        a(f"s_lshl_b32 s{sT0}, s{sT0}, 5")
        a(f"s_add_u32 s{sT0}, s{sT0}, {16<<20}")
        a(f"s_mov_b32 s{S_WS+2}, {32<<20}")
        for i in range(8):
            a(f"v_mov_b32 v{32+i}, s{sST+i}")
        a(f"v_mov_b32 v{vX}, s{sT0}")
        a("s_mov_b64 exec, 1")
        a(f"buffer_store_dwordx4 v[32:35], v{vX}, s[{S_WS}:{S_WS+3}], 0 offen")
        a(f"buffer_store_dwordx4 v[36:39], v{vX}, s[{S_WS}:{S_WS+3}], 0 offen offset:16")
    a.label("L_k1_end")
    a("s_endpgm")
    return dict(vgpr=224+128, accum=224, sgpr=48)

def gen_k2(a, opt):
    a.raw(f".globl {K2}")
    a.raw(".p2align 8")
    a.raw(f".type {K2},@function")
    a.label(K2)
    a("s_cmp_ge_u32 s2, 256")
    a("s_cbranch_scc1 L_k2_end")
    a("s_load_dwordx4 s[4:7], s[0:1], 16")
    a("s_load_dwordx2 s[8:9], s[0:1], 32")
    a("s_load_dwordx4 s[12:15], s[0:1], 48")
    a("s_load_dwordx4 s[16:19], s[0:1], 64")
    a("s_load_dwordx2 s[10:11], s[0:1], 88")
    a("v_and_b32 v1, 63, v0")
    a("v_lshrrev_b32 v2, 6, v0")
    a("s_lshr_b32 s20, s2, 3")
    a("s_and_b32 s21, s2, 7")
    a("s_lshl_b32 s22, s20, 16")
    a("s_lshl_b32 s23, s21, 7")
    a("s_add_u32 s22, s22, s23")
    a("v_lshrrev_b32 v3, 3, v1")
    a("v_lshlrev_b32 v4, 10, v3")
    a("v_and_b32 v5, 7, v1")
    a("v_lshl_add_u32 v4, v5, 4, v4")
    a("v_lshl_add_u32 v4, v2, 14, v4")
    a("v_add_u32 v4, s22, v4")
    a("v_add_u32 v5, 8192, v4")
    a("v_and_b32 v6, 1, v3")
    a("v_lshlrev_b32 v6, 6, v6")
    a("v_bfe_u32 v7, v1, 2, 1")
    a("v_lshl_add_u32 v6, v7, 5, v6")
    a("v_lshl_add_u32 v6, v2, 8, v6")
    a("v_lshrrev_b32 v7, 2, v3")
    a("v_bfe_u32 v8, v3, 1, 1")
    a("v_lshl_add_u32 v7, v7, 1, v8")
    a("s_mov_b32 s24, 0x02020000")
    a("v_mul_lo_u32 v7, v7, s24")
    a("v_add_u32 v7, 0x01000c0c, v7")
    a("s_lshl_b32 s25, s20, 5")
    a("s_lshl_b32 s26, s21, 2")
    a("s_add_u32 s25, s25, s26")
    a("v_and_b32 v8, 3, v1")
    a("v_add_u32 v9, s25, v8")
    a("v_lshrrev_b32 v10, 2, v1")
    a("v_mul_u32_u24 v11, 13, v9")
    a("v_add_u32 v11, v11, v10")
    a("v_lshlrev_b32 v11, 1, v11")
    a("v_lshlrev_b32 v12, 1, v10")
    a("v_cmp_gt_u32 vcc, 13, v10")
    a("v_cmp_eq_u32 s[28:29], 0, v2")
    a("s_and_b64 vcc, vcc, s[28:29]")
    a("v_mov_b32 v13, 0x7fffffff")
    a("s_nop 1")
    a("v_cndmask_b32 v11, v13, v11, vcc")
    a("v_cndmask_b32 v12, v13, v12, vcc")
    a("s_waitcnt lgkmcnt(0)")
    def srd(d, p, n):
        a(f"s_mov_b32 s{d}, s{p}")
        a(f"s_and_b32 s{d+1}, s{p+1}, 0xffff")
        a(f"s_mov_b32 s{d+2}, {n}")
        a(f"s_mov_b32 s{d+3}, 0x20000")
    srd(32, 10, 8 << 20)
    srd(36, 12, 1024)
    srd(40, 14, 1024)
    srd(44, 4, 1024*26)
    srd(48, 6, 26)
    srd(52, 18, 2048)
    srd(56, 8, 2)
    srd(60, 16, 2)
    a("s_mov_b32 s64, 0x200000")
    a("s_mov_b32 s65, 0x400000")
    a("s_mov_b32 s66, 0x600000")
    for nt in range(2):
        for q in range(4):
            so = "0" if q == 0 else f"s{63+q}"
            a(f"buffer_load_dwordx4 {vr(16+(nt*4+q)*4,4)}, v{4+nt}, s[32:35], {so} offen")
    for nt in range(2):
        a(f"buffer_load_dwordx4 {vr(48+nt*8,4)}, v6, s[36:39], 0 offen offset:{nt*128}")
        a(f"buffer_load_dwordx4 {vr(52+nt*8,4)}, v6, s[36:39], 0 offen offset:{nt*128+16}")
        a(f"buffer_load_dwordx4 {vr(64+nt*8,4)}, v6, s[40:43], 0 offen offset:{nt*128}")
        a(f"buffer_load_dwordx4 {vr(68+nt*8,4)}, v6, s[40:43], 0 offen offset:{nt*128+16}")
    a("buffer_load_ushort v80, v11, s[44:47], 0 offen")
    a("buffer_load_ushort v81, v12, s[48:51], 0 offen")
    a("v_mov_b32 v14, 0")
    a("buffer_load_ushort v82, v14, s[56:59], 0 offen")
    a("buffer_load_ushort v83, v14, s[60:63], 0 offen")
    a("s_waitcnt vmcnt(0)")
    a("v_lshlrev_b32 v80, 16, v80")
    a("v_lshlrev_b32 v81, 16, v81")
    a("v_mul_f32 v85, v80, v81")
    a("v_mov_b32 v84, 0")
    for nt in range(2):
        for rr in range(4):
            P = lambda q: 16 + (nt*4+q)*4 + rr
            a(f"v_add_f32 v86, v{P(0)}, v{P(1)}")
            a(f"v_add_f32 v87, v{P(2)}, v{P(3)}")
            a(f"v_perm_b32 v88, v{48+nt*8+2*rr+1}, v{48+nt*8+2*rr}, v7")
            a(f"v_perm_b32 v89, v{64+nt*8+2*rr+1}, v{64+nt*8+2*rr}, v7")
            a(f"v_add_f32 v86, v86, v87")
            if opt.mimic:
                a("v_cvt_pk_bf16_f32 v86, v86, v86")
                a("v_lshlrev_b32 v86, 16, v86")
            a(f"v_add_f32 v86, v86, v88")
            if opt.mimic:
                a("v_cvt_pk_bf16_f32 v86, v86, v86")
                a("v_lshlrev_b32 v86, 16, v86")
            a(f"v_max_f32 v86, 0, v86")
            a(f"v_fmac_f32 v84, v86, v89")
    for v in (84, 85):
        a("s_nop 1")
        a(f"v_add_f32_dpp v{v}, v{v}, v{v} row_shr:4 row_mask:0xf bank_mask:0xf bound_ctrl:0")
        a("s_nop 1")
        a(f"v_add_f32_dpp v{v}, v{v}, v{v} row_shr:8 row_mask:0xf bank_mask:0xf bound_ctrl:0")
    a("v_lshrrev_b32 v90, 4, v1")
    a("v_lshl_add_u32 v90, v2, 2, v90")
    a("v_lshl_add_u32 v90, v8, 4, v90")
    a("v_lshlrev_b32 v90, 2, v90")
    a("v_and_b32 v91, 15, v1")
    a("v_cmp_le_u32 vcc, 12, v91")
    a("s_and_saveexec_b64 s[28:29], vcc")
    a("ds_write_b32 v90, v84")
    a("ds_write_b32 v90, v85 offset:256")
    a("s_mov_b64 exec, s[28:29]")
    a("s_waitcnt lgkmcnt(0)")
    a("s_barrier")
    a("v_cmp_gt_u32 vcc, 4, v0")
    a("s_and_saveexec_b64 s[28:29], vcc")
    a("s_cbranch_execz L_k2_end")
    a("v_lshlrev_b32 v90, 6, v0")
    for i in range(4):
        a(f"ds_read_b128 {vr(16+i*4,4)}, v90 offset:{i*16}")
    a(f"ds_read_b128 {vr(32,4)}, v90 offset:256")
    a("s_waitcnt lgkmcnt(0)")
    for i in range(8):
        a(f"v_add_f32 v{16+i}, v{16+i}, v{24+i}")
    for i in range(4):
        a(f"v_add_f32 v{16+i}, v{16+i}, v{20+i}")
    a("v_add_f32 v16, v16, v17")
    a("v_add_f32 v18, v18, v19")
    a("v_add_f32 v16, v16, v18")
    a("v_add_f32 v32, v32, v33")
    a("v_add_f32 v34, v34, v35")
    a("v_add_f32 v32, v32, v34")
    a("v_lshlrev_b32 v82, 16, v82")
    a("v_lshlrev_b32 v83, 16, v83")
    def rnd(v):
        if opt.mimic:
            a(f"v_cvt_pk_bf16_f32 v{v}, v{v}, v{v}")
            a(f"v_lshlrev_b32 v{v}, 16, v{v}")
    rnd(16); rnd(32)
    a("v_add_f32 v16, v16, v83")
    a("v_add_f32 v32, v32, v82")
    rnd(16); rnd(32)
    a("v_add_f32 v16, v16, v32")
    rnd(16)
    a("v_mul_f32 v16, 0xbfb8aa3b, v16")
    a("v_exp_f32 v16, v16")
    a("s_nop 0")
    a("v_add_f32 v16, 1.0, v16")
    a("v_rcp_f32 v16, v16")
    a("s_nop 0")
    a("v_cvt_pk_bf16_f32 v16, v16, v16")
    a("v_add_u32 v17, s25, v0")
    a("v_lshlrev_b32 v17, 1, v17")
    a("buffer_store_short v16, v17, s[52:55], 0 offen")
    a.label("L_k2_end")
    a("s_endpgm")
    return dict(vgpr=96, accum=96, sgpr=72)

def kd(a, name, r):
    a.raw(".p2align 6")
    a.raw(f".amdhsa_kernel {name}")
    a.raw(f"  .amdhsa_next_free_vgpr {r['vgpr']}")
    a.raw(f"  .amdhsa_next_free_sgpr {r['sgpr']}")
    a.raw(f"  .amdhsa_accum_offset {r['accum']}")
    a.raw("  .amdhsa_group_segment_fixed_size 0")
    a.raw("  .amdhsa_kernarg_size 96")
    a.raw("  .amdhsa_user_sgpr_count 2")
    a.raw("  .amdhsa_user_sgpr_kernarg_segment_ptr 1")
    a.raw("  .amdhsa_system_sgpr_workgroup_id_x 1")
    a.raw(".end_amdhsa_kernel")

def main():
    ap = argparse.ArgumentParser()
    ap.add_argument("-o", default="standalone__deep_cross_wide_deep__recsys.s")
    ap.add_argument("--stamps", type=int, default=0)
    ap.add_argument("--pf", type=int, default=1)
    ap.add_argument("--mimic", type=int, default=1)
    ap.add_argument("--align", type=int, default=1)
    ap.add_argument("--sc1", type=int, default=0)
    ap.add_argument("--nt", type=int, default=0)
    opt = ap.parse_args()
    a = Asm()
    a.raw(HEADER.rstrip("\n"))
    a.raw(f"; @launch kernel={K1} grid=(256,1,1) block=(256,1,1) lds={LDS1}")
    a.raw(f"; @launch kernel={K2} grid=(256,1,1) block=(256,1,1) lds=512")
    a.raw('.amdgcn_target "amdgcn-amd-amdhsa--gfx950"')
    a.raw(".text")
    r1 = gen_k1(a, opt)
    r2 = gen_k2(a, opt)
    a.raw('.section .rodata,"a"')
    kd(a, K1, r1)
    kd(a, K2, r2)
    open(opt.o, "w").write(a.text())

main()
```
